```python
import torch

def _softmax(x, axis=-1):
    return torch.softmax(x, dim=axis)
def _gelu(x):
    return torch.nn.functional.gelu(x, approximate="tanh")
def _silu(x):
    return torch.nn.functional.silu(x)
def _sigmoid(x):
    return torch.sigmoid(x)
def _layernorm(x, axis=-1, eps=1e-5):
    m = x.mean(dim=axis, keepdim=True)
    v = x.var(dim=axis, keepdim=True, unbiased=False)
    return (x - m) / torch.sqrt(v + eps)
def _scatter_add(tgt, idx, src, axis=0):
    return tgt.clone().index_add_(axis, idx, src)
def _segment_sum(src, seg, n):
    out = torch.zeros((n,) + src.shape[1:], dtype=src.dtype)
    return out.index_add_(0, seg, src)
def _pad(x, pw):
    flat = tuple(v for pair in reversed(pw) for v in pair)
    return torch.nn.functional.pad(x, flat)

kernel_name = 'concat_heads__mha_block_cached__compressed_kv_cla__decode'

def setup_inputs():

    _w = (lambda a: (lambda t: t.to(torch.bfloat16) if t.is_floating_point() else t)(torch.as_tensor(a)))
    def _A_setup():
        B, Sq, D = 2, 1, 512
        H, Sk, Dh = 32, 4096, 128
        return {
            "x": _w((lambda *s: torch.randn(*s, dtype=torch.bfloat16) * 1.6)(B, Sq, D)),
            "k_cache": _w((lambda *s: torch.randn(*s, dtype=torch.bfloat16) * 1.6)(B, H, Sk, Dh)),
            "v_cache": _w((lambda *s: torch.randn(*s, dtype=torch.bfloat16) * 0.05)(B, H, Sk, Dh)),
            "wq": _w((lambda *s: torch.randn(*s, dtype=torch.bfloat16) * 1.6)(D, H * Dh) * (D ** -0.5)),
            "wo": _w((lambda *s: torch.randn(*s, dtype=torch.bfloat16) * 0.05)(H * Dh, D) * ((H * Dh) ** -0.5)),
        }
    _A_in = _A_setup()

    def _B_setup():
        B, H, Sq, Sk, D, M = 2, 32, 1, 4096, 128, 512
        Dc = 4 * D
        return {
            "x": _w((lambda *s: torch.randn(*s, dtype=torch.bfloat16) * 3.2)(B, Sq, M)),
            "c_kv": _w((lambda *s: torch.randn(*s, dtype=torch.bfloat16) * 0.1)(B, Sk, Dc)),
            "w_q": _w((lambda *s: torch.randn(*s, dtype=torch.bfloat16) * 6.4)(M, H, D) * (M ** -0.5)),
            "w_uk": _w((lambda *s: torch.randn(*s, dtype=torch.bfloat16) * 6.4)(Dc, H, D) * (Dc ** -0.5)),
            "w_uv": _w((lambda *s: torch.randn(*s, dtype=torch.bfloat16) * 0.1)(Dc, H, D) * (Dc ** -0.5)),
            "w_o": _w((lambda *s: torch.randn(*s, dtype=torch.bfloat16) * 0.1)(H, D, M) * ((H * D) ** -0.5)),
        }
    _B_in = _B_setup()

    return {
        "A_x": _A_in["x"],
        "A_k_cache": _A_in["k_cache"],
        "A_v_cache": _A_in["v_cache"],
        "A_wq": _A_in["wq"],
        "A_wo": _A_in["wo"],
        "B_x": _B_in["x"],
        "B_c_kv": _B_in["c_kv"],
        "B_w_q": _B_in["w_q"],
        "B_w_uk": _B_in["w_uk"],
        "B_w_uv": _B_in["w_uv"],
        "B_w_o": _B_in["w_o"],
    }

def reference(A_x, A_k_cache, A_v_cache, A_wq, A_wo, B_x, B_c_kv, B_w_q, B_w_uk, B_w_uv, B_w_o):
    def _A_ref(x, k_cache, v_cache, wq, wo):
        B, Sq, D = x.shape
        H, Dh = 32, 128
        q = (lambda x, *d: x.permute(*d))((x @ wq).reshape(B, Sq, H, Dh), 0, 2, 1, 3)
        scores = torch.einsum("bhqd,bhkd->bhqk", q, k_cache) * (Dh ** -0.5)
        p = _softmax(scores, axis=-1)
        o = torch.einsum("bhqk,bhkd->bhqd", p, v_cache)
        return (lambda x, *d: x.permute(*d))(o, 0, 2, 1, 3).reshape(B, Sq, H * Dh) @ wo

    def _B_ref(x, c_kv, w_q, w_uk, w_uv, w_o):
        B, Sq, M = x.shape[0], x.shape[1], x.shape[2]
        Sk = c_kv.shape[1]
        H, D = w_q.shape[1], w_q.shape[2]
        q = torch.einsum("bqm,mhd->bhqd", x, w_q)
        k = torch.einsum("bkc,chd->bhkd", c_kv, w_uk)
        v = torch.einsum("bkc,chd->bhkd", c_kv, w_uv)
        scores = torch.einsum("bhqd,bhkd->bhqk", q, k) * (D ** -0.5)
        off = Sk - Sq
        qi = torch.arange(Sq)[:, None]
        kj = torch.arange(Sk)[None, :]
        cmask = kj <= (qi + off)
        scores = torch.where(cmask[None, None], scores, -1e9)
        p = _softmax(scores, axis=-1)
        ctx = torch.einsum("bhqk,bhkd->bhqd", p, v)
        return torch.einsum("bhqd,hdm->bqm", ctx, w_o)

    a = _A_ref(A_x, A_k_cache, A_v_cache, A_wq, A_wo)
    b = _B_ref(B_x, B_c_kv, B_w_q, B_w_uk, B_w_uv, B_w_o)
    return torch.concatenate([a, b], axis=-1)
```

```python
import re

TRANS = ("v_exp_f32", "v_log_f32", "v_rcp_f32", "v_rsq_f32", "v_sqrt_f32", "v_sin_f32", "v_cos_f32",
         "v_rcp_iflag_f32")

def _regs(tok):
    tok = tok.strip()
    m = re.fullmatch(r"([vsa])(\d+)", tok)
    if m: return [(m.group(1), int(m.group(2)))]
    m = re.fullmatch(r"([vsa])\[(\d+):(\d+)\]", tok)
    if m: return [(m.group(1), i) for i in range(int(m.group(2)), int(m.group(3)) + 1)]
    if tok in ("vcc",): return [("s", "vcc")]
    if tok in ("vcc_lo", "vcc_hi"): return [("s", "vcc")]
    if tok == "exec": return [("s", "exec")]
    if tok == "m0": return [("s", "m0")]
    return []

class Ins:
    __slots__ = ("text", "mn", "ops", "kind", "dst", "src", "dpp", "passes", "states", "srcC")
    def __init__(self, text):
        self.text = text
        t = text.split(";")[0].strip()
        parts = t.split(None, 1)
        self.mn = parts[0] if parts else ""
        rest = parts[1] if len(parts) > 1 else ""
        ops = []
        depth = 0; cur = ""
        for ch in rest:
            if ch in "[(": depth += 1
            if ch in "])": depth -= 1
            if ch == "," and depth == 0:
                ops.append(cur.strip()); cur = ""
            else: cur += ch
        if cur.strip(): ops.append(cur.strip())
        mods = []
        if ops:
            last = ops[-1].split()
            ops[-1] = last[0] if last else ""
            mods = last[1:]
        self.ops = ops
        mn = self.mn
        self.dpp = any(m.startswith(("row_", "quad_perm", "wave_")) for m in mods) and mn.endswith("_dpp")
        self.passes = 0
        self.dst = []; self.src = []; self.srcC = []
        self.states = 1
        if mn == "s_nop":
            self.kind = "nop"; self.states = int(ops[0], 0) + 1; return
        if mn.startswith("v_mfma"):
            self.kind = "mfma"
            self.passes = 8 if "32x32" in mn else 4
            self.dst = _regs(ops[0]); self.src = _regs(ops[1]) + _regs(ops[2]) + _regs(ops[3]); self.srcC = _regs(ops[3])
            return
        if mn.startswith("v_cmp"):
            self.kind = "valu"
            self.dst = _regs(ops[0]); self.src = sum((_regs(o) for o in ops[1:]), [])
            return
        if mn.startswith(("v_readfirstlane", "v_readlane")):
            self.kind = "valu"; self.dst = _regs(ops[0]); self.src = sum((_regs(o) for o in ops[1:]), []); return
        if mn.startswith("v_permlane"):
            self.kind = "permlane"; self.dst = _regs(ops[0]) + _regs(ops[1]); self.src = _regs(ops[0]) + _regs(ops[1]); return
        if mn.startswith("v_"):
            self.kind = "valu"
            self.dst = _regs(ops[0]); srcs = ops[1:]
            if mn.startswith(("v_add_co", "v_sub_co", "v_addc_co", "v_subb_co", "v_mad_u64")):
                self.dst += _regs(ops[1]); srcs = ops[2:]
            self.src = sum((_regs(o) for o in srcs), [])
            if mn.startswith(("v_fmac", "v_dot2c", "v_mac", "v_pk_fmac")):
                self.src += self.dst
            return
        if mn.startswith(("buffer_", "global_", "flat_", "scratch_")):
            self.kind = "vmem"
            regs = [ _regs(o) for o in ops]
            if "load" in mn and "lds" not in mods and not mn.startswith("global_load_lds"):
                self.dst = regs[0]; self.src = sum(regs[1:], [])
            elif "atomic" in mn:
                self.src = sum(regs, []); self.dst = regs[0] if "sc0" in mods else []
            else:
                self.src = sum(regs, [])
            return
        if mn.startswith("ds_"):
            self.kind = "ds"
            regs = [_regs(o) for o in ops]
            if mn.startswith(("ds_read", "ds_bpermute", "ds_permute", "ds_swizzle")):
                self.dst = regs[0]; self.src = sum(regs[1:], [])
            else:
                self.src = sum(regs, [])
            return
        if mn.startswith("s_"):
            self.kind = "salu"
            regs = [_regs(o) for o in ops]
            if mn.startswith(("s_cmp", "s_cbranch", "s_branch", "s_waitcnt", "s_barrier", "s_endpgm", "s_sleep", "s_setprio")):
                self.src = sum(regs, [])
            else:
                self.dst = regs[0] if regs else []; self.src = sum(regs[1:], [])
            return
        self.kind = "other"

def pad_hazards(lines):
    out = []
    hist = []
    pos = 0
    last = {}
    def dist(p):
        return pos - p
    records = []
    for ln in lines:
        s = ln.strip()
        if not s or s.startswith(";") or s.endswith(":") or s.startswith("."):
            out.append(ln); continue
        ins = Ins(s)
        need = 0
        srcset = set(ins.src); dstset = set(ins.dst)
        for (p, pr) in records[-40:]:
            d = pos - p
            req = 0
            pdst = set(pr.dst)
            vdst = {r for r in pdst if r[0] in "va"}
            sdst = {r for r in pdst if r[0] == "s"}
            if pr.kind in ("valu", "permlane"):
                if vdst & srcset:
                    if ins.dpp: req = max(req, 2)
                    if ins.kind == "permlane": req = max(req, 2)
                    if ins.kind == "mfma": req = max(req, 2)
                    if ins.mn.startswith(("v_readlane", "v_readfirstlane")): req = max(req, 1)
                    if pr.mn.startswith(TRANS) and ins.kind in ("valu", "permlane") and not ins.mn.startswith(TRANS): req = max(req, 1)
                if sdst & srcset:
                    if ins.kind in ("valu", "permlane", "mfma"):
                        req = max(req, 2)
                        if ins.mn.startswith(("v_readlane", "v_writelane")): req = max(req, 4)
                    if ins.kind == "vmem": req = max(req, 5)
                if ("s", "exec") in sdst:
                    if ins.dpp: req = max(req, 5)
                    if ins.kind in ("permlane", "mfma"): req = max(req, 4)
            if pr.kind == "mfma":
                ov = vdst & (srcset | dstset)
                if ov:
                    big = {4: 8, 8: 12}[pr.passes]
                    if ins.kind == "mfma":
                        if vdst & set(ins.src) - set(ins.srcC):
                            req = max(req, big)
                        if vdst & set(ins.srcC):
                            same = (pr.dst == ins.srcC) and (pr.passes == ins.passes)
                            if not same: req = max(req, {4: 6, 8: 10}[pr.passes])
                    else:
                        req = max(req, big)
                if ins.kind in ("valu", "permlane") and set(pr.srcC) & dstset and not (set(pr.srcC) <= vdst):
                    req = max(req, {4: 3, 8: 7}[pr.passes])
            if pr.kind == "vmem" and ("store" in pr.mn or "atomic" in pr.mn) and ("x4" in pr.mn or "x3" in pr.mn):
                if ins.kind in ("valu", "permlane") and set(pr.src) & dstset: req = max(req, 2)
            if pr.kind == "salu" and ("s", "m0") in pdst:
                if ins.kind == "vmem" and ("lds" in ins.text): req = max(req, 1)
                if ins.kind == "ds" and "addtid" in ins.mn: req = max(req, 1)
            if req > d: need = max(need, req - d)
        while need > 0:
            k = min(need, 16)
            out.append(f"    s_nop {k-1}")
            pos += k; need -= k
        out.append(ln)
        pos += ins.states
        records.append((pos, ins))
        if len(records) > 64: records = records[-48:]
    return out

class Asm:
    def __init__(self):
        self.lines = []
    def __call__(self, s):
        for l in s.strip("\n").split("\n"):
            l = l.strip()
            if l: self.lines.append("    " + l)
    def label(self, l): self.lines.append(l + ":")
    def c(self, s): self.lines.append("    ; " + s)
    def raw(self, s): self.lines.append(s)
```

```python
import sys, math, struct
sys.path.insert(0, "gen")
from asmlib import Asm, pad_hazards

NAME = "concat_heads__mha_block_cached__compressed_kv_cla__decode"
KA = dict(A_x=0, A_k=8, A_v=16, A_wq=24, A_wo=32, B_x=40, B_ckv=48, B_wq=56, B_wuk=64, B_wuv=72, B_wo=80,
          out=88, dbg=96, ws=104)
SZ = dict(A_x=2048, A_k=67108864, A_v=67108864, A_wq=4194304, A_wo=4194304, B_x=2048, B_ckv=8388608,
          B_wq=4194304, B_wuk=4194304, B_wuv=4194304, B_wo=4194304, out=4096, dbg=256, ws=268435456)
WS_APART = 0x0
WS_QABS  = 0x40000
WS_B2ST  = 0x50000
WS_YA    = 0x60000
WS_YB    = 0x80000
WS_B2PART= 0x100000
NT = " nt"
PARTS = set((sys.argv[2] if len(sys.argv) > 2 else 'A,B1,B2,B3,E').split(','))
SCALE_L2E = (128 ** -0.5) * math.log2(math.e)
def f32bits(x): return struct.unpack("<I", struct.pack("<f", x))[0]

def srd(a, d, base_pair, nbytes):
    a(f"s_mov_b32 s{d}, s{base_pair}")
    a(f"s_mov_b32 s{d+1}, s{base_pair+1}")
    a(f"s_mov_b32 s{d+2}, {nbytes}")
    a(f"s_mov_b32 s{d+3}, 0x00020000")

V_TID, V_LANE, V_G, V_N, V_KEY4, V_Q4 = 0, 1, 2, 3, 4, 5
V_M0 = 10
def lane_setup(a):
    a(f"""v_and_b32 v{V_LANE}, 63, v0
          v_lshrrev_b32 v48, 6, v0
          v_lshrrev_b32 v{V_G}, 4, v{V_LANE}
          v_and_b32 v{V_N}, 15, v{V_LANE}
          v_readfirstlane_b32 s24, v48
          v_lshrrev_b32 v{V_KEY4}, 2, v{V_LANE}
          v_and_b32 v{V_KEY4}, 3, v{V_KEY4}
          v_and_b32 v{V_Q4}, 3, v{V_LANE}""")
    a.c("selector masks: mask_j = (m>>1==j) ? (m&1 ? 0xffff0000 : 0xffff) : 0 , m = lane&15")
    a(f"""v_lshrrev_b32 v48, 1, v{V_N}
          v_and_b32 v49, 1, v{V_N}
          v_mov_b32 v50, 0xffff
          v_mov_b32 v51, 0xffff0000
          v_cmp_eq_u32 vcc, 1, v49
          v_cndmask_b32 v50, v50, v51, vcc
          v_mov_b32 v51, 0""")
    for j in range(4):
        a(f"v_cmp_eq_u32 vcc, {j}, v48")
        a(f"v_cndmask_b32 v{V_M0+j}, v51, v50, vcc")
    a.c("lane masks for quad levels: s[32:33] = lanes with bit1 set, s[34:35] = lanes with bit0 set")
    a(f"""v_and_b32 v48, 2, v{V_LANE}
          v_cmp_ne_u32 s[32:33], 0, v48
          v_and_b32 v48, 1, v{V_LANE}
          v_cmp_ne_u32 s[34:35], 0, v48""")

def tree16(a, P, out, tmp):
    for j in range(8):
        a(f"v_permlane32_swap_b32 v{P[j]}, v{P[j+8]}")
        a(f"v_add_f32 v{P[j]}, v{P[j]}, v{P[j+8]}")
    for j in range(4):
        a(f"v_permlane16_swap_b32 v{P[j]}, v{P[j+4]}")
        a(f"v_add_f32 v{P[j]}, v{P[j]}, v{P[j+4]}")
    t0, t1 = tmp
    for j in range(2):
        a(f"v_cndmask_b32 v{t0}, v{P[j]}, v{P[j+2]}, s[32:33]")
        a(f"v_cndmask_b32 v{t1}, v{P[j+2]}, v{P[j]}, s[32:33]")
        a(f"v_add_f32_dpp v{P[j]}, v{t1}, v{t0} quad_perm:[2,3,0,1] row_mask:0xf bank_mask:0xf")
    a(f"v_cndmask_b32 v{t0}, v{P[0]}, v{P[1]}, s[34:35]")
    a(f"v_cndmask_b32 v{t1}, v{P[1]}, v{P[0]}, s[34:35]")
    a(f"v_add_f32_dpp v{out}, v{t1}, v{t0} quad_perm:[1,0,3,2] row_mask:0xf bank_mask:0xf")

def wave_reduce(a, x, op, tmp):
    ins = {"max": "v_max_f32", "add": "v_add_f32"}[op]
    t0, t1 = tmp
    for r in (8, 4, 2, 1):
        a(f"{ins}_dpp v{x}, v{x}, v{x} row_ror:{r} row_mask:0xf bank_mask:0xf")
    for pl in ("v_permlane16_swap_b32", "v_permlane32_swap_b32"):
        a(f"v_mov_b32 v{t0}, v{x}")
        a(f"v_mov_b32 v{t1}, v{x}")
        a(f"{pl} v{t0}, v{t1}")
        a(f"{ins} v{x}, v{t0}, v{t1}")

def selector_mfma(a, acc, Areg, src, step, Breg):
    for j in range(4):
        a(f"v_and_b32_dpp v{Areg+j}, v{src}, v{V_M0+j} row_newbcast:{step} row_mask:0xf bank_mask:0xf")
    a(f"v_mfma_f32_16x16x32_bf16 v[{acc}:{acc+3}], v[{Areg}:{Areg+3}], v[{Breg}:{Breg+3}], v[{acc}:{acc+3}]")

A_LDS_QP, A_LDS_QB, A_LDS_O, A_LDS_ML = 0, 4096, 6144, 10240
A_LDS = 12288
def role_A(a, D=16, wgreg="s2"):
    RING = 64
    WQR = RING + 4 * D
    a.c("======== role A ========")
    a(f"""s_load_dwordx8 s[40:47], s[0:1], {KA['A_x']}
          s_load_dwordx2 s[48:49], s[0:1], {KA['ws']}""")
    a(f"""s_and_b32 s25, {wgreg}, 7
          s_lshr_b32 s26, {wgreg}, 3
          s_and_b32 s27, s26, 3
          s_lshl_b32 s27, s27, 3
          s_add_u32 s25, s25, s27
          s_lshr_b32 s26, {wgreg}, 5
          s_and_b32 s27, s26, 3
          s_lshr_b32 s26, s26, 2""")
    lane_setup(a)
    a.c("voffK = key4*256 + G*64 + q4*16 ; voffV = G*4096 + n*16 ; voffW = G*8192 + n*16 ; voffX=(4n+G)*2")
    a(f"""v_lshlrev_b32 v6, 8, v{V_KEY4}
          v_lshl_add_u32 v6, v{V_G}, 6, v6
          v_lshl_add_u32 v6, v{V_Q4}, 4, v6
          v_lshlrev_b32 v48, 4, v{V_N}
          v_lshl_add_u32 v7, v{V_G}, 12, v48
          v_lshl_add_u32 v8, v{V_G}, 13, v48
          v_lshl_add_u32 v9, v{V_N}, 2, v{V_G}
          v_lshlrev_b32 v9, 1, v9""")
    a("s_waitcnt lgkmcnt(0)")
    srd(a, 4, 42, SZ['A_k']); srd(a, 8, 44, SZ['A_v']); srd(a, 12, 46, SZ['A_wq']); srd(a, 16, 40, SZ['A_x'])
    srd(a, 20, 48, SZ['ws'])
    a.c("s28 = K/V base offset of this wave ; s29 = wq soffset base ; s30 = x soffset")
    a("""s_lshl_b32 s28, s26, 5
         s_add_u32 s28, s28, s25
         s_lshl_b32 s28, s28, 20
         s_lshl_b32 s31, s27, 18
         s_add_u32 s28, s28, s31
         s_lshl_b32 s31, s24, 15
         s_add_u32 s28, s28, s31
         s_lshl_b32 s29, s24, 19
         s_lshl_b32 s31, s25, 8
         s_add_u32 s29, s29, s31
         s_lshl_b32 s30, s26, 10
         s_lshl_b32 s31, s24, 7
         s_add_u32 s30, s30, s31""")
    a.c("x slice (compact): lane (G,s) <- x[b][64w+4s+G]")
    a("buffer_load_ushort v52, v9, s[16:19], s30 offen")
    a.c("wq loads: 16 x (4 rows x 256B)")
    for i in range(16):
        if i: a("s_add_u32 s29, s29, 32768")
        a(f"buffer_load_dwordx4 v[{WQR+4*i}:{WQR+4*i+3}], v8, s[12:15], s29 offen")
    def issue(u):
        slot = RING + 4 * (u % D)
        if u < 32:
            j = u
            if j % 4 == 0: a(f"s_add_u32 s50, s28, {(j // 4) * 4096}")
            a(f"buffer_load_dwordx4 v[{slot}:{slot+3}], v6, s[4:7], s50 offen offset:{(j % 4) * 1024}{NT}")
        else:
            blk, s = (u - 32) >> 4, (u - 32) & 15
            if s == 0: a(f"s_add_u32 s51, s28, {blk * 16384}")
            a(f"buffer_load_dwordx4 v[{slot}:{slot+3}], v7, s[8:11], s51 offen offset:{(4*(s&3) + (s>>2)) * 256}{NT}")
    for u in range(D): issue(u)
    a.c("q GEMV partial over this wave's 64 rows")
    a("v_mov_b32 v24, 0\nv_mov_b32 v25, 0\nv_mov_b32 v26, 0\nv_mov_b32 v27, 0")
    a(f"s_waitcnt vmcnt({D+16})")
    a("v_lshl_or_b32 v52, v52, 16, v52")
    for i in range(16):
        a(f"s_waitcnt vmcnt({D + 15 - i})")
        selector_mfma(a, 24, 28, 52, i, WQR + 4*i)
    a.c("partial q -> LDS (lanes 0..31), barrier, sum of 8 partials, bf16, redistribute")
    a(f"""v_lshlrev_b32 v48, 5, v{V_N}
          v_lshl_add_u32 v48, v{V_G}, 4, v48
          s_lshl_b32 s31, s24, 9
          v_add_u32 v49, s31, v48
          s_mov_b32 exec_lo, -1\ns_mov_b32 exec_hi, 0""")
    a(f"ds_write_b128 v49, v[24:27] offset:{A_LDS_QP}")
    a("s_mov_b64 exec, -1")
    a("s_waitcnt lgkmcnt(0)\ns_barrier")
    a("s_mov_b32 exec_lo, -1\ns_mov_b32 exec_hi, 0")
    for w in range(8):
        a(f"ds_read_b128 v[{WQR+4*w}:{WQR+4*w+3}], v48 offset:{A_LDS_QP + 512*w}")
    a("s_waitcnt lgkmcnt(0)")
    for w in range(1, 8):
        for r in range(4):
            a(f"v_add_f32 v{WQR+r}, v{WQR+r}, v{WQR+4*w+r}")
    a(f"""v_cvt_pk_bf16_f32 v{WQR}, v{WQR}, v{WQR+1}
          v_cvt_pk_bf16_f32 v{WQR+1}, v{WQR+2}, v{WQR+3}
          v_lshrrev_b32 v48, 1, v48
          s_lshl_b32 s31, s24, 8
          v_add_u32 v48, s31, v48""")
    a(f"ds_write_b64 v48, v[{WQR}:{WQR+1}] offset:{A_LDS_QB}")
    a("s_mov_b64 exec, -1")
    a(f"""v_lshlrev_b32 v49, 6, v{V_G}
          v_lshl_add_u32 v49, v{V_Q4}, 4, v49
          v_add_u32 v49, s31, v49
          s_waitcnt lgkmcnt(0)""")
    a(f"ds_read_b128 v[14:17], v49 offset:{A_LDS_QB}")
    a("s_waitcnt lgkmcnt(0)")
    a.c("---- K phase")
    P = list(range(32, 48))
    def wait_for(u):
        n = min(D - 1, 63 - u)
        a(f"s_waitcnt vmcnt({n})")
    for blk in range(2):
        for i in range(16):
            u = blk * 16 + i
            slot = RING + 4 * (u % D)
            wait_for(u)
            a(f"v_dot2_f32_bf16 v{P[i]}, v{slot}, v14, 0")
            for r in range(1, 4):
                a(f"v_dot2c_f32_bf16 v{P[i]}, v{slot+r}, v{14+r}")
            if u + D < 64: issue(u + D)
        tree16(a, P, 18 + blk, (48, 49))
    a.c("---- softmax over the wave's 128 keys (exact wave max)")
    a(f"v_max_f32 v23, v18, v19")
    wave_reduce(a, 23, "max", (48, 49))
    a(f"s_mov_b32 s36, {f32bits(SCALE_L2E):#x}")
    a("""v_mul_f32 v23, s36, v23
         v_fma_f32 v18, v18, s36, -v23
         v_fma_f32 v19, v19, s36, -v23
         v_exp_f32 v18, v18
         v_exp_f32 v19, v19
         v_cvt_pk_bf16_f32 v20, v18, v18
         v_cvt_pk_bf16_f32 v21, v19, v19
         v_and_b32 v48, 0xffff0000, v20
         v_and_b32 v49, 0xffff0000, v21
         v_add_f32 v22, v48, v49
         v_mov_b32 v24, 0
         v_mov_b32 v25, 0
         v_mov_b32 v26, 0
         v_mov_b32 v27, 0""")
    wave_reduce(a, 22, "add", (48, 49))
    a.c("---- V phase")
    for blk in range(2):
        for s in range(16):
            u = 32 + blk * 16 + s
            slot = RING + 4 * (u % D)
            wait_for(u)
            selector_mfma(a, 24, 28, 20 + blk, s, slot)
            if u + D < 64: issue(u + D)
    a.c("---- in-WG combine: write (o, mc, l) of each wave to LDS")
    a(f"""v_lshlrev_b32 v48, 5, v{V_N}
          v_lshl_add_u32 v48, v{V_G}, 4, v48
          s_lshl_b32 s31, s24, 9
          v_add_u32 v49, s31, v48
          s_lshl_b32 s31, s24, 3
          v_mov_b32 v50, s31
          v_mov_b32 v52, v23
          v_mov_b32 v53, v22
          s_mov_b32 exec_lo, -1\ns_mov_b32 exec_hi, 0""")
    a(f"ds_write_b128 v49, v[24:27] offset:{A_LDS_O}")
    a("s_mov_b64 exec, 1")
    a(f"ds_write_b64 v50, v[52:53] offset:{A_LDS_ML}")
    a("s_mov_b64 exec, -1")
    a("s_waitcnt lgkmcnt(0)\ns_barrier")
    a("s_cmp_lg_u32 s24, 0\ns_cbranch_scc1 A_done")
    a.c("wave 0: combine 8 wave partials")
    a("v_mov_b32 v50, 0")
    a(f"ds_read_b128 v[64:67], v50 offset:{A_LDS_ML}")
    a(f"ds_read_b128 v[68:71], v50 offset:{A_LDS_ML+16}")
    a(f"ds_read_b128 v[72:75], v50 offset:{A_LDS_ML+32}")
    a(f"ds_read_b128 v[76:79], v50 offset:{A_LDS_ML+48}")
    for w in range(8):
        a(f"ds_read_b128 v[{80+4*w}:{83+4*w}], v48 offset:{A_LDS_O + 512*w}")
    a("s_waitcnt lgkmcnt(0)")
    a("v_max3_f32 v54, v64, v66, v68\nv_max3_f32 v54, v54, v70, v72\nv_max3_f32 v54, v54, v74, v76\nv_max_f32 v54, v54, v78")
    for w in range(8):
        a(f"v_sub_f32 v{64+2*w}, v{64+2*w}, v54")
        a(f"v_exp_f32 v{64+2*w}, v{64+2*w}")
    a("v_mul_f32 v55, v64, v65")
    for w in range(1, 8):
        a(f"v_fmac_f32 v55, v{64+2*w}, v{65+2*w}")
    for r in range(4):
        a(f"v_mul_f32 v{56+r}, v64, v{80+r}")
    for w in range(1, 8):
        for r in range(4):
            a(f"v_fmac_f32 v{56+r}, v{64+2*w}, v{80+4*w+r}")
    a.c("store o (lanes 0..31), mc, l")
    a(f"""s_lshl_b32 s31, {wgreg}, 10
          s_add_u32 s31, s31, {WS_APART}
          s_mov_b32 exec_lo, -1\ns_mov_b32 exec_hi, 0""")
    a("buffer_store_dwordx4 v[56:59], v48, s[20:23], s31 offen")
    a("s_mov_b64 exec, 1")
    a("buffer_store_dwordx2 v[54:55], v50, s[20:23], s31 offen offset:512")
    a("s_mov_b64 exec, -1")
    a.label("A_done")


def exec_lo32(a):
    a("s_mov_b32 exec_lo, -1\ns_mov_b32 exec_hi, 0")

def gemv_rows64_partial(a, nvec, Xregs, accs, Areg, Wregs, first_wait):
    for v in range(nvec):
        for r in range(4): a(f"v_mov_b32 v{accs[v]+r}, 0")
    for i in range(16):
        a(f"s_waitcnt vmcnt({first_wait(i)})")
        for v in range(nvec):
            selector_mfma(a, accs[v], Areg, Xregs[v], i, Wregs[i])

def reduce_partials_to_bf16(a, nvec, accs, lds_part, lds_out, tmpbase, out_stride, waves=8):
    a(f"""v_lshlrev_b32 v48, 5, v{V_N}
          v_lshl_add_u32 v48, v{V_G}, 4, v48
          s_lshl_b32 s31, s24, {9 + (nvec - 1)}
          v_add_u32 v49, s31, v48""")
    exec_lo32(a)
    for v in range(nvec):
        a(f"ds_write_b128 v49, v[{accs[v]}:{accs[v]+3}] offset:{lds_part + 512*v}")
    a("s_mov_b64 exec, -1")
    a("s_waitcnt lgkmcnt(0)\ns_barrier")
    exec_lo32(a)
    for v in range(nvec):
        for w in range(waves):
            a(f"ds_read_b128 v[{tmpbase+4*w}:{tmpbase+4*w+3}], v48 offset:{lds_part + 512*nvec*w + 512*v}")
        a("s_waitcnt lgkmcnt(0)")
        for w in range(1, waves):
            for r in range(4):
                a(f"v_add_f32 v{tmpbase+r}, v{tmpbase+r}, v{tmpbase+4*w+r}")
        a(f"""v_cvt_pk_bf16_f32 v{tmpbase}, v{tmpbase}, v{tmpbase+1}
              v_cvt_pk_bf16_f32 v{tmpbase+1}, v{tmpbase+2}, v{tmpbase+3}
              v_lshrrev_b32 v50, 1, v48
              s_lshl_b32 s31, s24, {out_stride}
              v_add_u32 v50, s31, v50""")
        a(f"ds_write_b64 v50, v[{tmpbase}:{tmpbase+1}] offset:{lds_out + 256*v}")
    a("s_mov_b64 exec, -1")

B1_LDS_QP, B1_LDS_QB = 0, 8192
B1_LDS = 8192 + 8 * 512
def role_B1(a, wgreg="s2"):
    a.c("======== role B1 (head = wg) ========")
    a(f"""s_load_dwordx2 s[40:41], s[0:1], {KA['B_x']}
          s_load_dwordx4 s[44:47], s[0:1], {KA['B_wq']}
          s_load_dwordx2 s[48:49], s[0:1], {KA['ws']}""")
    a(f"s_mov_b32 s25, {wgreg}")
    lane_setup(a)
    a.c("v8 = voffW = G*8192+n*16 ; v6 = voffUK = key4*8192 + G*64 + q4*16 ; v9 = voffX ; v7 = store off (16G+4q4+key4)*2")
    a(f"""v_lshlrev_b32 v48, 4, v{V_N}
          v_lshl_add_u32 v8, v{V_G}, 13, v48
          v_lshlrev_b32 v6, 13, v{V_KEY4}
          v_lshl_add_u32 v6, v{V_G}, 6, v6
          v_lshl_add_u32 v6, v{V_Q4}, 4, v6
          v_lshl_add_u32 v9, v{V_N}, 2, v{V_G}
          v_lshlrev_b32 v9, 1, v9
          v_lshl_add_u32 v7, v{V_G}, 2, v{V_Q4}
          v_lshl_add_u32 v7, v7, 2, v{V_KEY4}
          v_lshlrev_b32 v7, 1, v7""")
    a("s_waitcnt lgkmcnt(0)")
    srd(a, 4, 44, SZ['B_wq']); srd(a, 8, 46, SZ['B_wuk']); srd(a, 16, 40, SZ['B_x']); srd(a, 20, 48, SZ['ws'])
    a("""s_lshl_b32 s29, s24, 19
         s_lshl_b32 s31, s25, 8
         s_add_u32 s29, s29, s31
         s_mov_b32 s28, s29
         s_lshl_b32 s30, s24, 7""")
    a.c("x slices for both batches")
    a("buffer_load_ushort v52, v9, s[16:19], s30 offen")
    a("buffer_load_ushort v53, v9, s[16:19], s30 offen offset:1024")
    WQR, UKR = 64, 128
    for i in range(16):
        if i: a("s_add_u32 s29, s29, 32768")
        a(f"buffer_load_dwordx4 v[{WQR+4*i}:{WQR+4*i+3}], v8, s[4:7], s29 offen")
    for j in range(16):
        if j: a("s_add_u32 s28, s28, 32768")
        a(f"buffer_load_dwordx4 v[{UKR+4*j}:{UKR+4*j+3}], v6, s[8:11], s28 offen")
    a("s_waitcnt vmcnt(32)")
    a("v_lshl_or_b32 v52, v52, 16, v52\nv_lshl_or_b32 v53, v53, 16, v53")
    gemv_rows64_partial(a, 2, [52, 53], [24, 56], 28, [WQR + 4*i for i in range(16)], lambda i: 16 + 15 - i)
    reduce_partials_to_bf16(a, 2, [24, 56], B1_LDS_QP, B1_LDS_QB, 192, 9)
    a.c("q chunk regs: b0 -> v[14:17], b1 -> v[60:63]")
    a(f"""v_lshlrev_b32 v49, 6, v{V_G}
          v_lshl_add_u32 v49, v{V_Q4}, 4, v49
          s_lshl_b32 s31, s24, 9
          v_add_u32 v49, s31, v49
          s_waitcnt lgkmcnt(0)""")
    a(f"ds_read_b128 v[14:17], v49 offset:{B1_LDS_QB}")
    a(f"ds_read_b128 v[60:63], v49 offset:{B1_LDS_QB + 256}")
    a("s_waitcnt lgkmcnt(0)")
    a.c("absorb: qabs[b][c] = sum_d q[b][d] w_uk[c][h][d] for this wave's 64 rows c")
    P0 = list(range(32, 48)); P1 = list(range(192, 208))
    for j in range(16):
        a(f"s_waitcnt vmcnt({15 - j})")
        for (P, q) in ((P0, 14), (P1, 60)):
            a(f"v_dot2_f32_bf16 v{P[j]}, v{UKR+4*j}, v{q}, 0")
            for r in range(1, 4):
                a(f"v_dot2c_f32_bf16 v{P[j]}, v{UKR+4*j+r}, v{q+r}")
    tree16(a, P0, 18, (48, 49))
    tree16(a, P1, 19, (48, 49))
    a(f"s_mov_b32 s36, {f32bits(SCALE_L2E):#x}")
    a("""v_mul_f32 v18, s36, v18
         v_mul_f32 v19, s36, v19
         v_cvt_pk_bf16_f32 v18, v18, v18
         v_cvt_pk_bf16_f32 v19, v19, v19""")
    a.c("store: WS_QABS + ((b*32+h)*512 + 64w + cidx)*2")
    a(f"""s_lshl_b32 s31, s25, 10
          s_add_u32 s31, s31, {WS_QABS}
          s_lshl_b32 s30, s24, 7
          s_add_u32 s31, s31, s30
          s_add_u32 s30, s31, 32768""")
    a("buffer_store_short v18, v7, s[20:23], s31 offen")
    a("buffer_store_short v19, v7, s[20:23], s30 offen")


B2_QB = 131072;  B2_PB = 131072; B2_PSTR = 272
B2_SMAX = B2_PB + 32 * B2_PSTR; B2_SSUM = B2_SMAX + 1024
B2_LDS = 163840
def cross_g(a, x, op, tmp):
    ins = {"max": "v_max_f32", "add": "v_add_f32"}[op]
    t0, t1 = tmp
    for pl in ("v_permlane16_swap_b32", "v_permlane32_swap_b32"):
        a(f"v_mov_b32 v{t0}, v{x}\nv_mov_b32 v{t1}, v{x}")
        a(f"{pl} v{t0}, v{t1}")
        a(f"{ins} v{x}, v{t0}, v{t1}")

def role_B2(a, wgreg="s2", wait_b1=None):
    a.c("======== role B2 (b = wg>>5, chunk = wg&31) ========")
    a(f"""s_load_dwordx2 s[40:41], s[0:1], {KA['B_ckv']}
          s_load_dwordx2 s[48:49], s[0:1], {KA['ws']}""")
    a(f"s_lshr_b32 s25, {wgreg}, 5\ns_and_b32 s26, {wgreg}, 31")
    lane_setup(a)
    a("s_waitcnt lgkmcnt(0)")
    srd(a, 4, 40, SZ['B_ckv']); srd(a, 20, 48, SZ['ws'])
    a.c("DMA the wave's 16 C rows into LDS with XOR swizzle")
    a(f"""v_lshlrev_b32 v22, 4, v{V_LANE}
          s_lshl_b32 s28, s25, 22
          s_lshl_b32 s31, s26, 17
          s_add_u32 s28, s28, s31
          s_lshl_b32 s31, s24, 14
          s_add_u32 s28, s28, s31
          s_mov_b32 s29, s31""")
    for i in range(16):
        a(f"v_xor_b32 v23, {i*16}, v22")
        a("s_mov_b32 m0, s29")
        a(f"buffer_load_dwordx4 v23, s[4:7], s28 offen{NT} lds")
        if i < 15: a("s_add_u32 s28, s28, 1024\ns_add_u32 s29, s29, 1024")
    if wait_b1: wait_b1(a)
    a.c("DMA Qabs rows (heads 4w..4w+3) into LDS with the same swizzle")
    a(f"""s_lshl_b32 s28, s25, 15
          s_add_u32 s28, s28, {WS_QABS}
          s_lshl_b32 s31, s24, 12
          s_add_u32 s28, s28, s31
          s_add_u32 s29, s31, {B2_QB}
          s_lshl_b32 s30, s24, 6
          s_and_b32 s30, s30, 0xc0""")
    for i in range(4):
        a(f"s_add_u32 s31, s30, {i*16}")
        a("v_xor_b32 v23, s31, v22")
        a("s_mov_b32 m0, s29")
        a("buffer_load_dwordx4 v23, s[20:23], s28 offen lds")
        if i < 3: a("s_add_u32 s28, s28, 1024\ns_add_u32 s29, s29, 1024")
    a.c("per-lane LDS offsets: base0[tt] = i*1024 + ((4tt+g)^i)*16")
    for tt in range(4):
        a(f"""v_lshl_add_u32 v48, v{V_G}, 0, {4*tt}
              v_xor_b32 v48, v48, v{V_N}
              v_lshlrev_b32 v48, 4, v48
              v_lshl_add_u32 v48, v{V_N}, 10, v48
              s_lshl_b32 s31, s24, 14
              v_add_u32 v{14+tt}, s31, v48
              v_add_u32 v{18+tt}, {B2_QB}, v48""")
    a("s_waitcnt vmcnt(0)\ns_barrier")
    a.c("---- phase 1: S^T[16 keys x 32 heads] for this wave")
    for r in range(8): a(f"v_mov_b32 v{24+r}, 0")
    def p1_reads(t):
        buf = t & 1; tt = t & 3; hi = t >> 2
        a(f"ds_read_b128 v[{32+4*buf}:{35+4*buf}], v{14+tt} offset:{hi*256}")
        a(f"ds_read_b128 v[{40+4*buf}:{43+4*buf}], v{18+tt} offset:{hi*256}")
        a(f"ds_read_b128 v[{144+4*buf}:{147+4*buf}], v{18+tt} offset:{hi*256 + 16384}")
    p1_reads(0)
    for t in range(16):
        buf = t & 1
        if t < 15:
            p1_reads(t + 1); a("s_waitcnt lgkmcnt(3)")
        else:
            a("s_waitcnt lgkmcnt(0)")
        a(f"v_mfma_f32_16x16x32_bf16 v[24:27], v[{32+4*buf}:{35+4*buf}], v[{40+4*buf}:{43+4*buf}], v[24:27]")
        a(f"v_mfma_f32_16x16x32_bf16 v[28:31], v[{32+4*buf}:{35+4*buf}], v[{144+4*buf}:{147+4*buf}], v[28:31]")
    a.c("---- per-head max over the WG's 128 keys")
    a("""v_max3_f32 v52, v24, v25, v26
         v_max_f32 v52, v52, v27
         v_max3_f32 v53, v28, v29, v30
         v_max_f32 v53, v53, v31""")
    cross_g(a, 52, "max", (48, 49)); cross_g(a, 53, "max", (48, 49))
    a(f"""v_lshlrev_b32 v50, 5, v{V_N}
          s_lshl_b32 s31, s24, 2
          v_add_u32 v50, s31, v50
          v_add_u32 v50, {B2_PB}, v50
          s_barrier
          s_mov_b64 exec, 0xffff""")
    a(f"ds_write_b32 v50, v52 offset:{B2_SMAX - B2_PB}")
    a(f"ds_write_b32 v50, v53 offset:{B2_SMAX - B2_PB + 512}")
    a(f"""s_mov_b64 exec, -1
          v_lshlrev_b32 v51, 5, v{V_N}
          v_add_u32 v51, {B2_PB}, v51
          s_waitcnt lgkmcnt(0)
          s_barrier""")
    a(f"ds_read_b128 v[56:59], v51 offset:{B2_SMAX - B2_PB}")
    a(f"ds_read_b128 v[60:63], v51 offset:{B2_SMAX - B2_PB + 16}")
    a(f"ds_read_b128 v[64:67], v51 offset:{B2_SMAX - B2_PB + 512}")
    a(f"ds_read_b128 v[68:71], v51 offset:{B2_SMAX - B2_PB + 528}")
    a("s_waitcnt lgkmcnt(0)")
    a("""v_max3_f32 v52, v56, v57, v58
         v_max3_f32 v52, v52, v59, v60
         v_max3_f32 v52, v52, v61, v62
         v_max_f32 v52, v52, v63
         v_max3_f32 v53, v64, v65, v66
         v_max3_f32 v53, v53, v67, v68
         v_max3_f32 v53, v53, v69, v70
         v_max_f32 v53, v53, v71""")
    a.c("p = exp2(s - m) -> bf16 -> LDS P[head][key]; partial sums")
    for r in range(4):
        a(f"v_sub_f32 v{24+r}, v{24+r}, v52\nv_sub_f32 v{28+r}, v{28+r}, v53")
    for r in range(8): a(f"v_exp_f32 v{24+r}, v{24+r}")
    a("""v_cvt_pk_bf16_f32 v56, v24, v25
         v_cvt_pk_bf16_f32 v57, v26, v27
         v_cvt_pk_bf16_f32 v58, v28, v29
         v_cvt_pk_bf16_f32 v59, v30, v31""")
    a(f"""s_lshl_b32 s31, s24, 5
          v_mov_b32 v50, {B2_PSTR}
          v_mul_lo_u32 v50, v{V_N}, v50
          v_lshl_add_u32 v50, v{V_G}, 3, v50
          v_add_u32 v50, s31, v50
          v_add_u32 v50, {B2_PB}, v50""")
    a(f"ds_write_b64 v50, v[56:57] offset:0")
    a(f"ds_write_b64 v50, v[58:59] offset:{16*B2_PSTR}")
    for hf in range(2):
        a(f"""v_lshlrev_b32 v60, 16, v{56+2*hf}
              v_and_b32 v61, 0xffff0000, v{56+2*hf}
              v_lshlrev_b32 v62, 16, v{57+2*hf}
              v_and_b32 v63, 0xffff0000, v{57+2*hf}
              v_add_f32 v60, v60, v61
              v_add_f32 v62, v62, v63
              v_add_f32 v{54+hf}, v60, v62""")
        cross_g(a, 54 + hf, "add", (48, 49))
    a(f"""v_lshlrev_b32 v50, 5, v{V_N}
          s_lshl_b32 s31, s24, 2
          v_add_u32 v50, s31, v50
          v_add_u32 v50, {B2_PB}, v50
          s_mov_b64 exec, 0xffff""")
    a(f"ds_write_b32 v50, v54 offset:{B2_SSUM - B2_PB}")
    a(f"ds_write_b32 v50, v55 offset:{B2_SSUM - B2_PB + 512}")
    a("s_mov_b64 exec, -1\ns_waitcnt lgkmcnt(0)\ns_barrier")
    a.c("---- wave 0 publishes per-head (mc, L)")
    a("s_cmp_lg_u32 s24, 0\ns_cbranch_scc1 B2_nostat")
    exec_lo32(a)
    a(f"v_lshlrev_b32 v50, 5, v{V_LANE}\nv_add_u32 v50, {B2_PB}, v50")
    a(f"ds_read_b128 v[56:59], v50 offset:{B2_SSUM - B2_PB}")
    a(f"ds_read_b128 v[60:63], v50 offset:{B2_SSUM - B2_PB + 16}")
    a(f"v_cmp_gt_u32 vcc, 16, v{V_LANE}")
    a("v_cndmask_b32 v64, v53, v52, vcc")
    a("s_waitcnt lgkmcnt(0)")
    a("""v_add_f32 v56, v56, v57
         v_add_f32 v58, v58, v59
         v_add_f32 v60, v60, v61
         v_add_f32 v62, v62, v63
         v_add_f32 v56, v56, v58
         v_add_f32 v60, v60, v62
         v_add_f32 v65, v56, v60""")
    a(f"""s_lshl_b32 s31, {wgreg}, 8
          s_add_u32 s31, s31, {WS_B2ST}
          v_lshlrev_b32 v50, 3, v{V_LANE}""")
    a("buffer_store_dwordx2 v[64:65], v50, s[20:23], s31 offen")
    a("s_mov_b64 exec, -1")
    a.label("B2_nostat")
    a.c("---- phase 2: ctx_lat partial[32 heads x 64 c] for c-range of this wave")
    a(f"""v_lshrrev_b32 v48, 2, v{V_N}
          v_and_b32 v49, 3, v{V_N}
          v_lshl_add_u32 v50, v{V_G}, 3, v48
          s_and_b32 s30, s24, 1
          s_lshl_b32 s30, s30, 3
          s_lshr_b32 s31, s24, 1
          s_lshl_b32 s31, s31, 8""")
    for nt in range(4):
        for rd in range(2):
            reg = 56 + 2*nt + rd
            a(f"""v_add_u32 v51, {4*rd}, v50
                  v_and_b32 v144, 15, v51
                  v_lshrrev_b32 v145, 1, v49
                  v_add_u32 v145, s30, v145
                  v_add_u32 v145, {2*nt}, v145
                  v_xor_b32 v145, v145, v144
                  v_lshlrev_b32 v145, 4, v145
                  v_lshl_add_u32 v145, v51, 10, v145
                  v_and_b32 v146, 1, v49
                  v_lshl_add_u32 v145, v146, 3, v145
                  v_add_u32 v{reg}, s31, v145""")
    a(f"""v_mov_b32 v54, {B2_PSTR}
          v_mul_lo_u32 v54, v{V_N}, v54
          v_lshl_add_u32 v54, v{V_G}, 4, v54
          v_add_u32 v54, {B2_PB}, v54""")
    ACC = 64; PA = 96; BB = 112
    for r in range(32): a(f"v_mov_b32 v{ACC+r}, 0")
    def p2_reads(u):
        buf = u & 1
        for hf in range(2):
            a(f"ds_read_b128 v[{PA+8*buf+4*hf}:{PA+8*buf+4*hf+3}], v54 offset:{hf*16*B2_PSTR + u*64}")
        for nt in range(4):
            for rd in range(2):
                rg = BB + 16*buf + 4*nt + 2*rd
                a(f"ds_read_b64_tr_b16 v[{rg}:{rg+1}], v{56+2*nt+rd} offset:{(u & 1) * 32768}")
    p2_reads(0)
    for u in range(4):
        buf = u & 1
        if u < 3:
            if u == 1:
                for k in range(8): a(f"v_add_u32 v{56+k}, 0x10000, v{56+k}")
            p2_reads(u + 1); a("s_waitcnt lgkmcnt(10)")
        else:
            a("s_waitcnt lgkmcnt(0)")
        for hf in range(2):
            for nt in range(4):
                ac = ACC + 16*hf + 4*nt
                a(f"v_mfma_f32_16x16x32_bf16 v[{ac}:{ac+3}], v[{PA+8*buf+4*hf}:{PA+8*buf+4*hf+3}], v[{BB+16*buf+4*nt}:{BB+16*buf+4*nt+3}], v[{ac}:{ac+3}]")
    a.c("---- store partial rows: WS_B2PART + (wg*32 + head)*2048 + c*4")
    a(f"""v_lshlrev_b32 v50, 13, v{V_G}
          v_lshl_add_u32 v50, v{V_N}, 2, v50
          s_lshl_b32 s28, {wgreg}, 16
          s_add_u32 s28, s28, {WS_B2PART}
          s_lshl_b32 s31, s24, 8
          s_add_u32 s28, s28, s31""")
    for hf in range(2):
        for r in range(4):
            a(f"s_add_u32 s31, s28, {(16*hf + r) * 2048}")
            for nt in range(4):
                a(f"buffer_store_dword v{ACC+16*hf+4*nt+r}, v50, s[20:23], s31 offen offset:{nt*64}")


E_LDS_CL, E_LDS_QP, E_LDS_CTX, E_LDS_YP = 0, 2048, 10240, 16384
E_LDS = 49152
WO_R = 128
def wo_issue(a, srdw):
    a(f"""v_lshlrev_b32 v48, 10, v{V_G}
          v_lshl_add_u32 v{V_WOFF}, v{V_N}, 4, v48
          s_lshl_b32 s37, s25, 17
          s_lshl_b32 s31, s24, 14
          s_add_u32 s37, s37, s31""")
    for i in range(4):
        if i: a("s_add_u32 s37, s37, 4096")
        for cb in range(4):
            rg = WO_R + 4 * (i * 4 + cb)
            a(f"buffer_load_dwordx4 v[{rg}:{rg+3}], v{V_WOFF}, s[{srdw}:{srdw+3}], s37 offen offset:{cb*256}{NT}")
V_WOFF = 9
def wo_gemv_publish(a, ws_y, n_other_outstanding, tag):
    a.c("compact selector sources: lane (G,s): ctx[b][16w + 4(s&3) + G]")
    a(f"""v_and_b32 v48, 3, v{V_N}
          v_lshl_add_u32 v48, v48, 2, v{V_G}
          v_lshlrev_b32 v48, 1, v48
          s_lshl_b32 s31, s24, 9
          s_lshl_b32 s30, s24, 5
          s_add_u32 s31, s31, s30
          v_add_u32 v48, s31, v48""")
    a(f"ds_read_u16 v52, v48 offset:{E_LDS_CTX}")
    a(f"ds_read_u16 v53, v48 offset:{E_LDS_CTX + 256}")
    ACC = 64
    for r in range(32): a(f"v_mov_b32 v{ACC+r}, 0")
    a("s_waitcnt lgkmcnt(0)")
    a("v_lshl_or_b32 v52, v52, 16, v52\nv_lshl_or_b32 v53, v53, 16, v53")
    for i in range(4):
        a(f"s_waitcnt vmcnt({n_other_outstanding + 12 - 4*i})")
        for b in range(2):
            for j in range(4):
                a(f"v_and_b32_dpp v{28+j}, v{52+b}, v{V_M0+j} row_newbcast:{i} row_mask:0xf bank_mask:0xf")
            for cb in range(4):
                ac = ACC + 16*b + 4*cb; rg = WO_R + 4*(i*4 + cb)
                a(f"v_mfma_f32_16x16x32_bf16 v[{ac}:{ac+3}], v[28:31], v[{rg}:{rg+3}], v[{ac}:{ac+3}]")
    a.c("cross-wave reduce through LDS")
    a(f"""v_lshlrev_b32 v48, 5, v{V_N}
          v_lshl_add_u32 v48, v{V_G}, 4, v48
          s_lshl_b32 s31, s24, 12
          v_add_u32 v49, s31, v48""")
    exec_lo32(a)
    for b in range(2):
        for cb in range(4):
            ac = ACC + 16*b + 4*cb
            a(f"ds_write_b128 v49, v[{ac}:{ac+3}] offset:{E_LDS_YP + b*2048 + cb*512}")
    a("s_mov_b64 exec, -1\ns_waitcnt lgkmcnt(0)\ns_barrier")
    a(f"""v_lshlrev_b32 v48, 4, v{V_LANE}
          s_lshl_b32 s31, s24, 9
          v_add_u32 v49, s31, v48""")
    exec_lo32(a)
    for w in range(8):
        a(f"ds_read_b128 v[{ACC+4*w}:{ACC+4*w+3}], v49 offset:{E_LDS_YP + 4096*w}")
    a("s_waitcnt lgkmcnt(0)")
    for w in range(1, 8):
        for r in range(4): a(f"v_add_f32 v{ACC+r}, v{ACC+r}, v{ACC+4*w+r}")
    a(f"""s_lshl_b32 s30, s25, 12
          s_add_u32 s30, s30, {ws_y}
          s_add_u32 s30, s30, s31""")
    a(f"buffer_store_dwordx4 v[{ACC}:{ACC+3}], v48, s[20:23], s30 offen")
    a("s_mov_b64 exec, -1")

def role_B3(a, wgreg="s2"):
    a.c("======== role B3 (head = wg) ========")
    a(f"""s_load_dwordx4 s[44:47], s[0:1], {KA['B_wuv']}
          s_load_dwordx2 s[48:49], s[0:1], {KA['ws']}""")
    a(f"s_mov_b32 s25, {wgreg}")
    lane_setup(a)
    a(f"""v_lshlrev_b32 v48, 4, v{V_N}
          v_lshl_add_u32 v8, v{V_G}, 13, v48""")
    a("s_waitcnt lgkmcnt(0)")
    srd(a, 4, 44, SZ['B_wuv']); srd(a, 8, 46, SZ['B_wo']); srd(a, 20, 48, SZ['ws'])
    a.c("stats (mc,l): lane ch=lane&31 ; b = w>>2 ; cq = w&3")
    a(f"""s_lshr_b32 s26, s24, 2
          s_and_b32 s27, s24, 3
          v_and_b32 v48, 31, v{V_LANE}
          v_lshlrev_b32 v48, 8, v48
          s_lshl_b32 s28, s26, 13
          s_lshl_b32 s31, s25, 3
          s_add_u32 s28, s28, s31
          s_add_u32 s28, s28, {WS_B2ST}""")
    a("buffer_load_dwordx2 v[54:55], v48, s[20:23], s28 offen")
    a.c("w_uv loads (rows c = 64w+4i+g')")
    a("""s_lshl_b32 s29, s24, 19
         s_lshl_b32 s31, s25, 8
         s_add_u32 s29, s29, s31""")
    UVR = 192
    for i in range(16):
        if i: a("s_add_u32 s29, s29, 32768")
        a(f"buffer_load_dwordx4 v[{UVR+4*i}:{UVR+4*i+3}], v8, s[4:7], s29 offen{NT}")
    a.c("partial ctx_lat loads: 32 chunks x dwordx2 per lane")
    a(f"""v_lshlrev_b32 v49, 3, v{V_LANE}
          s_lshl_b32 s28, s26, 21
          s_add_u32 s28, s28, {WS_B2PART}
          s_lshl_b32 s31, s25, 11
          s_add_u32 s28, s28, s31
          s_lshl_b32 s31, s27, 9
          s_add_u32 s28, s28, s31""")
    for ch in range(32):
        if ch: a("s_add_u32 s28, s28, 65536")
        a(f"buffer_load_dwordx2 v[{64+2*ch}:{65+2*ch}], v49, s[20:23], s28 offen")
    a.c("combine factors (stats load is the oldest of 49 outstanding)")
    a("s_waitcnt vmcnt(48)")
    a("v_mov_b32 v56, v54")
    wave_reduce(a, 56, "max", (48, 49))
    a(f"""v_sub_f32 v54, v54, v56
          v_exp_f32 v54, v54
          v_cmp_gt_u32 vcc, 32, v{V_LANE}
          v_mul_f32 v55, v54, v55
          v_mov_b32 v57, 0
          v_cndmask_b32 v55, v57, v55, vcc""")
    wave_reduce(a, 55, "add", (48, 49))
    a("v_rcp_f32 v55, v55\nv_mul_f32 v54, v54, v55")
    for ch in range(32):
        a(f"v_readlane_b32 s{64+ch}, v54, {ch}")
    a("v_mov_b32 v58, 0\nv_mov_b32 v59, 0")
    for ch in range(32):
        a(f"s_waitcnt vmcnt({31 - ch + (16 if ch > 15 else 0)})")
        a(f"v_fmac_f32 v58, s{64+ch}, v{64+2*ch}")
        a(f"v_fmac_f32 v59, s{64+ch}, v{65+2*ch}")
        if ch == 15: wo_issue(a, 8)
    a(f"""v_cvt_pk_bf16_f32 v58, v58, v59
          v_lshlrev_b32 v48, 2, v{V_LANE}
          s_lshl_b32 s31, s26, 10
          s_lshl_b32 s30, s27, 8
          s_add_u32 s31, s31, s30
          v_add_u32 v48, s31, v48""")
    a(f"ds_write_b32 v48, v58 offset:{E_LDS_CL}")
    a("s_waitcnt lgkmcnt(0)\ns_barrier")
    a.c("GEMV1: ctx[b][128] = ctx_lat[b][:] . w_uv[:,h,:]  (rows 64w..64w+63 per wave)")
    a(f"""v_lshl_add_u32 v48, v{V_N}, 2, v{V_G}
          v_lshlrev_b32 v48, 1, v48
          s_lshl_b32 s31, s24, 7
          v_add_u32 v48, s31, v48""")
    a(f"ds_read_u16 v52, v48 offset:{E_LDS_CL}")
    a(f"ds_read_u16 v53, v48 offset:{E_LDS_CL + 1024}")
    a("s_waitcnt lgkmcnt(0)")
    a("v_lshl_or_b32 v52, v52, 16, v52\nv_lshl_or_b32 v53, v53, 16, v53")
    gemv_rows64_partial(a, 2, [52, 53], [24, 56], 28, [UVR + 4*i for i in range(16)], lambda i: 16)
    reduce_partials_to_bf16(a, 2, [24, 56], E_LDS_QP, E_LDS_CTX, 64, 9)
    a("s_waitcnt lgkmcnt(0)")
    wo_gemv_publish(a, WS_YB, 0, "B3")

def role_EA(a, wgreg="s2"):
    a.c("======== role EA (head = wg) ========")
    a(f"""s_load_dwordx2 s[44:45], s[0:1], {KA['A_wo']}
          s_load_dwordx2 s[48:49], s[0:1], {KA['ws']}""")
    a(f"s_mov_b32 s25, {wgreg}")
    lane_setup(a)
    a("s_waitcnt lgkmcnt(0)")
    srd(a, 8, 44, SZ['A_wo']); srd(a, 20, 48, SZ['ws'])
    wo_issue(a, 8)
    a.c("combine the 4 quarter partials of (b,h): A-wg id = (h%8) + 8*((h/8)%4) + 32*(4b+qd) = h + 32*(4b+qd)")
    a(f"""v_lshlrev_b32 v48, 5, v{V_N}
          v_lshl_add_u32 v48, v{V_G}, 4, v48
          v_mov_b32 v50, 0
          s_lshl_b32 s28, s25, 10
          s_add_u32 s28, s28, {WS_APART}""")
    for bq in range(8):
        a(f"buffer_load_dwordx4 v[{64+4*bq}:{67+4*bq}], v48, s[20:23], s28 offen")
        a(f"buffer_load_dwordx2 v[{96+2*bq}:{97+2*bq}], v50, s[20:23], s28 offen offset:512")
        if bq < 7: a("s_add_u32 s28, s28, 32768")
    a("s_waitcnt vmcnt(0)")
    a(f"""s_lshl_b32 s31, s24, 9
          v_lshrrev_b32 v50, 1, v48
          v_add_u32 v50, s31, v50""")
    for b in range(2):
        M = [96 + 2*(4*b + q) for q in range(4)]
        a(f"v_max3_f32 v54, v{M[0]}, v{M[1]}, v{M[2]}\nv_max_f32 v54, v54, v{M[3]}")
        for q in range(4):
            a(f"v_sub_f32 v{M[q]}, v{M[q]}, v54\nv_exp_f32 v{M[q]}, v{M[q]}")
        a(f"v_mul_f32 v55, v{M[0]}, v{M[0]+1}")
        for q in range(1, 4): a(f"v_fmac_f32 v55, v{M[q]}, v{M[q]+1}")
        a("v_rcp_f32 v55, v55")
        for q in range(4): a(f"v_mul_f32 v{M[q]}, v{M[q]}, v55")
        for r in range(4):
            a(f"v_mul_f32 v{56+r}, v{M[0]}, v{64+16*b+r}")
            for q in range(1, 4): a(f"v_fmac_f32 v{56+r}, v{M[q]}, v{64+16*b+4*q+r}")
        a("v_cvt_pk_bf16_f32 v56, v56, v57\nv_cvt_pk_bf16_f32 v57, v58, v59")
        exec_lo32(a)
        a(f"ds_write_b64 v50, v[56:57] offset:{E_LDS_CTX + 256*b}")
        a("s_mov_b64 exec, -1")
    a("s_waitcnt lgkmcnt(0)")
    wo_gemv_publish(a, WS_YA, 0, "EA")

def role_FIN(a, wgreg="s2"):
    a.c("======== final reduce: wg = branch*2 + b ; thread = column ========")
    a(f"""s_load_dwordx2 s[44:45], s[0:1], {KA['out']}
          s_load_dwordx2 s[48:49], s[0:1], {KA['ws']}""")
    a(f"""s_lshr_b32 s25, {wgreg}, 1
          s_and_b32 s26, {wgreg}, 1
          v_lshlrev_b32 v1, 2, v0
          v_lshlrev_b32 v2, 1, v0""")
    a("s_waitcnt lgkmcnt(0)")
    srd(a, 4, 44, SZ['out']); srd(a, 20, 48, SZ['ws'])
    a(f"""s_lshl_b32 s28, s25, 17
          s_add_u32 s28, s28, {WS_YA}
          s_lshl_b32 s31, s26, 11
          s_add_u32 s28, s28, s31""")
    for h in range(32):
        a(f"buffer_load_dword v{8+h}, v1, s[20:23], s28 offen")
        if h < 31: a("s_add_u32 s28, s28, 4096")
    for h in range(1, 32):
        a(f"s_waitcnt vmcnt({31 - h})")
        if h == 1: a("s_waitcnt vmcnt(30)")
        a(f"v_add_f32 v8, v8, v{8+h}")
    a(f"""v_cvt_pk_bf16_f32 v8, v8, v8
          s_lshl_b32 s31, s26, 11
          s_lshl_b32 s30, s25, 10
          s_add_u32 s31, s31, s30""")
    a("buffer_store_short v8, v2, s[4:7], s31 offen")

def kernel_text(name, body_lines, vgprs, sgprs=102, wgid_y=False):
    t = []
    t.append(f".globl {name}")
    t.append(".p2align 8")
    t.append(f".type {name},@function")
    t.append(f"{name}:")
    t += body_lines
    return t

def descriptor(name, vgprs, sgprs=102):
    acc = (vgprs + 3) // 4 * 4
    return f""".amdhsa_kernel {name}
  .amdhsa_next_free_vgpr {vgprs}
  .amdhsa_next_free_sgpr {sgprs}
  .amdhsa_accum_offset {acc}
  .amdhsa_group_segment_fixed_size 0
  .amdhsa_kernarg_size 112
  .amdhsa_user_sgpr_count 2
  .amdhsa_user_sgpr_kernarg_segment_ptr 1
  .amdhsa_system_sgpr_workgroup_id_x 1
.end_amdhsa_kernel""".split("\n")

HEADER = open(f"cdna_kernels/{NAME}.s.ref").read().split("; @launch")[0]

def build(out_path, D=16):
    kernels = []
    a = Asm()
    a("s_cmp_ge_u32 s2, 256\ns_cbranch_scc1 kA_end")
    role_A(a, D)
    a.label("kA_end")
    a("s_endpgm")
    kernels.append(("attnA_kernel", 256, 512, A_LDS, 64 + 4*D + 64, pad_hazards(a.lines)))
    if "B1" in PARTS:
        a = Asm()
        a("s_cmp_ge_u32 s2, 32\ns_cbranch_scc1 kB1_end")
        role_B1(a)
        a.label("kB1_end")
        a("s_endpgm")
        kernels.append(("b1_kernel", 32, 512, B1_LDS, 224, pad_hazards(a.lines)))
    if "B2" in PARTS:
        a = Asm()
        a("s_cmp_ge_u32 s2, 64\ns_cbranch_scc1 kB2_end")
        role_B2(a)
        a.label("kB2_end")
        a("s_endpgm")
        kernels.append(("b2_kernel", 64, 512, B2_LDS, 152, pad_hazards(a.lines)))
    if "B3" in PARTS:
        a = Asm()
        a("s_cmp_ge_u32 s2, 32\ns_cbranch_scc1 kB3_end")
        role_B3(a)
        a.label("kB3_end")
        a("s_endpgm")
        kernels.append(("b3_kernel", 32, 512, E_LDS, 256, pad_hazards(a.lines)))
    if "E" in PARTS:
        a = Asm()
        a("s_cmp_ge_u32 s2, 32\ns_cbranch_scc1 kEA_end")
        role_EA(a)
        a.label("kEA_end")
        a("s_endpgm")
        kernels.append(("ea_kernel", 32, 512, E_LDS, 192, pad_hazards(a.lines)))
        a = Asm()
        a("s_cmp_ge_u32 s2, 4\ns_cbranch_scc1 kF_end")
        role_FIN(a)
        a.label("kF_end")
        a("s_endpgm")
        kernels.append(("fin_kernel", 4, 512, 0, 48, pad_hazards(a.lines)))
    lines = [HEADER.rstrip("\n")]
    for (name, grid, block, lds, vg, _) in kernels:
        lines.append(f"; @launch kernel={name} grid=({grid},1,1) block=({block},1,1) lds={lds}")
    lines.append('.amdgcn_target "amdgcn-amd-amdhsa--gfx950"')
    lines.append(".text")
    for (name, grid, block, lds, vg, body) in kernels:
        lines += kernel_text(name, body, vg)
    lines.append('.section .rodata,"a"')
    for (name, grid, block, lds, vg, body) in kernels:
        lines.append(".p2align 6")
        lines += descriptor(name, vg)
    open(out_path, "w").write("\n".join(lines) + "\n")

if __name__ == "__main__":
    out = sys.argv[1] if len(sys.argv) > 1 else "kA.s"
    build(out)
    print("wrote", out)
```
